```python
import torch

def _softmax(x, axis=-1):
    return torch.softmax(x, dim=axis)
def _gelu(x):
    return torch.nn.functional.gelu(x, approximate="tanh")
def _silu(x):
    return torch.nn.functional.silu(x)
def _sigmoid(x):
    return torch.sigmoid(x)
def _layernorm(x, axis=-1, eps=1e-5):
    m = x.mean(dim=axis, keepdim=True)
    v = x.var(dim=axis, keepdim=True, unbiased=False)
    return (x - m) / torch.sqrt(v + eps)
def _scatter_add(tgt, idx, src, axis=0):
    return tgt.clone().index_add_(axis, idx, src)
def _segment_sum(src, seg, n):
    out = torch.zeros((n,) + src.shape[1:], dtype=src.dtype)
    return out.index_add_(0, seg, src)
def _pad(x, pw):
    flat = tuple(v for pair in reversed(pw) for v in pair)
    return torch.nn.functional.pad(x, flat)

kernel_name = 'recurrent_scan__gqa_block_cached__mixer_channel_mlp__decode'

def setup_inputs():

    _w = (lambda a: (lambda t: t.to(torch.bfloat16) if t.is_floating_point() else t)(torch.as_tensor(a)))
    def _A_setup():
        B, Sq, D = 1, 1, 512
        Hq, Hkv, Sk, Dh = 32, 8, 32768, 128
        assert Hq % Hkv == 0, (Hq, Hkv)
        return {
            "x": _w((lambda *s: torch.randn(*s, dtype=torch.bfloat16) * 0.1)(B, Sq, D)),
            "k_cache": _w((lambda *s: torch.randn(*s, dtype=torch.bfloat16) * 0.8)(B, Hkv, Sk, Dh)),
            "v_cache": _w((lambda *s: torch.randn(*s, dtype=torch.bfloat16) * 3.2)(B, Hkv, Sk, Dh)),
            "wq": _w((lambda *s: torch.randn(*s, dtype=torch.bfloat16) * 0.8)(D, Hq * Dh) * (D ** -0.5)),
            "wo": _w((lambda *s: torch.randn(*s, dtype=torch.bfloat16) * 3.2)(Hq * Dh, D) * ((Hq * Dh) ** -0.5)),
        }
    _A_in = _A_setup()

    def _B_setup():
        B, S, D, F = 1, 1, 512, 1792
        return {
            "x": _w((lambda *s: torch.randn(*s, dtype=torch.bfloat16) * 0.1)(B, S, D)),
            "w1": _w((lambda *s: torch.randn(*s, dtype=torch.bfloat16) * 3.2)(D, F) * (D ** -0.5)),
            "b1": _w((lambda *s: torch.randn(*s, dtype=torch.bfloat16) * 3.2)(F)),
            "w2": _w((lambda *s: torch.randn(*s, dtype=torch.bfloat16) * 3.2)(F, D) * (F ** -0.5)),
            "b2": _w((lambda *s: torch.randn(*s, dtype=torch.bfloat16) * 3.2)(D)),
        }
    _B_in = _B_setup()

    return {
        "A_x": _A_in["x"],
        "A_k_cache": _A_in["k_cache"],
        "A_v_cache": _A_in["v_cache"],
        "A_wq": _A_in["wq"],
        "A_wo": _A_in["wo"],
        "B_x": _B_in["x"],
        "B_w1": _B_in["w1"],
        "B_b1": _B_in["b1"],
        "B_w2": _B_in["w2"],
        "B_b2": _B_in["b2"],
    }

def reference(A_x, A_k_cache, A_v_cache, A_wq, A_wo, B_x, B_w1, B_b1, B_w2, B_b2):
    def _A_ref(x, k_cache, v_cache, wq, wo):
        B, Sq, D = x.shape
        Hq, Dh = 32, 128
        Hkv = k_cache.shape[1]
        rep = Hq // Hkv
        q = (lambda x, *d: x.permute(*d))((x @ wq).reshape(B, Sq, Hq, Dh), 0, 2, 1, 3)
        k = (lambda x, n, axis: torch.repeat_interleave(x, n, dim=axis))(k_cache, rep, axis=1)
        v = (lambda x, n, axis: torch.repeat_interleave(x, n, dim=axis))(v_cache, rep, axis=1)
        scores = torch.einsum("bhqd,bhkd->bhqk", q, k) * (Dh ** -0.5)
        p = _softmax(scores, axis=-1)
        o = torch.einsum("bhqk,bhkd->bhqd", p, v)
        return (lambda x, *d: x.permute(*d))(o, 0, 2, 1, 3).reshape(B, Sq, Hq * Dh) @ wo

    def _B_ref(x, w1, b1, w2, b2):
        y = _layernorm(x, axis=-1)
        h = _gelu(torch.einsum("bsd,df->bsf", y, w1) + b1)
        return torch.einsum("bsf,fd->bsd", h, w2) + b2

    x = A_x
    xn = _layernorm(x, axis=-1)
    s = _A_ref(xn, A_k_cache, A_v_cache, A_wq, A_wo)
    g = _silu(_B_ref(xn, B_w1, B_b1, B_w2, B_b2))
    return x + s * g
```

```python
import sys
L=[]
def e(s): L.append(s)
NAME="recurrent_scan__gqa_block_cached__mixer_channel_mlp__decode"
hdr=open(f"cdna_kernels/{NAME}.s.ref").read().split("; Override launch")[0]
WS_Q=0; WS_H=8192; WS_ML=32768; WS_PO=65536; WS_S3=1<<20; WS_G=(1<<20)+65536
e(hdr.rstrip())
e("; @launch kernel=k1_kernel grid=(184,1,1) block=(256,1,1) lds=12288")
e("; @launch kernel=k2_kernel grid=(256,1,1) block=(512,1,1) lds=147968")
e("; @launch kernel=k3_kernel grid=(80,1,1) block=(256,1,1) lds=12288")
e('.amdgcn_target "amdgcn-amd-amdhsa--gfx950"')
e(".text")
e("""
.macro WSUM v, t
  s_nop 1
  v_add_f32_dpp \\v, \\v, \\v quad_perm:[1,0,3,2] row_mask:0xf bank_mask:0xf
  s_nop 1
  v_add_f32_dpp \\v, \\v, \\v quad_perm:[2,3,0,1] row_mask:0xf bank_mask:0xf
  s_nop 1
  v_add_f32_dpp \\v, \\v, \\v row_half_mirror row_mask:0xf bank_mask:0xf
  s_nop 1
  v_add_f32_dpp \\v, \\v, \\v row_mirror row_mask:0xf bank_mask:0xf
  v_mov_b32 \\t, \\v
  s_nop 1
  v_permlane16_swap_b32 \\v, \\t
  v_add_f32 \\v, \\v, \\t
  v_mov_b32 \\t, \\v
  s_nop 1
  v_permlane32_swap_b32 \\v, \\t
  v_add_f32 \\v, \\v, \\t
.endm
.macro RBF v
  v_cvt_pk_bf16_f32 \\v, \\v, \\v
  v_lshlrev_b32 \\v, 16, \\v
.endm
.macro BSUM v, t, q, vw, lo
  WSUM \\v, \\t
  s_barrier
  ds_write_b32 \\vw, \\v offset:\\lo
  s_waitcnt lgkmcnt(0)
  s_barrier
  v_mov_b32 \\t, 0
  ds_read_b128 v[\\q:\\q+3], \\t offset:\\lo
  s_waitcnt lgkmcnt(0)
  v_add_f32 \\v, v[\\q], v[\\q+1]
  v_add_f32 \\t, v[\\q+2], v[\\q+3]
  v_add_f32 \\v, \\v, \\t
.endm
.macro LNORM a, b
  v_add_f32 v20, \\a, \\b
  BSUM v20, v21, 24, v19, 8192
  v_mul_f32 v20, 0x3b000000, v20      ; mean (1/512)
  v_sub_f32 v22, \\a, v20
  v_sub_f32 v23, \\b, v20
  v_mul_f32 v22, v22, v22
  v_fmac_f32 v22, v23, v23
  BSUM v22, v21, 24, v19, 8192
  v_mul_f32 v22, 0x3b000000, v22      ; var
  RBF v22
  RBF v20
  v_add_f32 v22, 0x3727c5ac, v22      ; + 1e-5
  RBF v22
  v_sqrt_f32 v22, v22
  s_nop 0
  RBF v22
  v_rcp_f32 v22, v22
  v_sub_f32 \\a, \\a, v20
  v_sub_f32 \\b, \\b, v20
  RBF \\a
  RBF \\b
  v_mul_f32 \\a, \\a, v22
  v_mul_f32 \\b, \\b, v22
  RBF \\a
  RBF \\b
.endm
.macro FMA8 a, d, x
  v_lshlrev_b32 v28, 16, v[\\d]
  v_and_b32 v29, 0xffff0000, v[\\d]
  v_fmac_f32 v[\\a], v28, \\x
  v_fmac_f32 v[\\a+1], v29, \\x
  v_lshlrev_b32 v28, 16, v[\\d+1]
  v_and_b32 v29, 0xffff0000, v[\\d+1]
  v_fmac_f32 v[\\a+2], v28, \\x
  v_fmac_f32 v[\\a+3], v29, \\x
  v_lshlrev_b32 v28, 16, v[\\d+2]
  v_and_b32 v29, 0xffff0000, v[\\d+2]
  v_fmac_f32 v[\\a+4], v28, \\x
  v_fmac_f32 v[\\a+5], v29, \\x
  v_lshlrev_b32 v28, 16, v[\\d+3]
  v_and_b32 v29, 0xffff0000, v[\\d+3]
  v_fmac_f32 v[\\a+6], v28, \\x
  v_fmac_f32 v[\\a+7], v29, \\x
.endm
""")
def red32():
    e("""
  s_barrier
  v_lshlrev_b32 v16, 5, v0
  ds_write_b128 v16, v[8:11]
  ds_write_b128 v16, v[12:15] offset:16
  s_waitcnt lgkmcnt(0)
  s_barrier
  v_and_b32 v16, 31, v0
  v_lshrrev_b32 v17, 5, v0
  v_lshlrev_b32 v17, 10, v17
  v_lshl_add_u32 v16, v16, 2, v17
  ds_read_b32 v8, v16
  ds_read_b32 v9, v16 offset:128
  ds_read_b32 v10, v16 offset:256
  ds_read_b32 v11, v16 offset:384
  ds_read_b32 v12, v16 offset:512
  ds_read_b32 v13, v16 offset:640
  ds_read_b32 v14, v16 offset:768
  ds_read_b32 v15, v16 offset:896
  s_waitcnt lgkmcnt(0)
  v_add_f32 v8, v8, v9
  v_add_f32 v10, v10, v11
  v_add_f32 v12, v12, v13
  v_add_f32 v14, v14, v15
  v_add_f32 v8, v8, v10
  v_add_f32 v12, v12, v14
  v_add_f32 v8, v8, v12
  v_lshlrev_b32 v16, 2, v0
  ds_write_b32 v16, v8 offset:8448
  s_waitcnt lgkmcnt(0)
  s_barrier
  v_and_b32 v16, 31, v0
  v_lshlrev_b32 v16, 2, v16
  ds_read_b32 v8, v16 offset:8448
  ds_read_b32 v9, v16 offset:8576
  ds_read_b32 v10, v16 offset:8704
  ds_read_b32 v11, v16 offset:8832
  ds_read_b32 v12, v16 offset:8960
  ds_read_b32 v13, v16 offset:9088
  ds_read_b32 v14, v16 offset:9216
  ds_read_b32 v15, v16 offset:9344
  s_waitcnt lgkmcnt(0)
  v_add_f32 v8, v8, v9
  v_add_f32 v10, v10, v11
  v_add_f32 v12, v12, v13
  v_add_f32 v14, v14, v15
  v_add_f32 v8, v8, v10
  v_add_f32 v12, v12, v14
  v_add_f32 v8, v8, v12
""")
def kd(name,vg):
    e(f""".section .rodata,"a"
.p2align 6
.amdhsa_kernel {name}
  .amdhsa_next_free_vgpr {vg}
  .amdhsa_next_free_sgpr 64
  .amdhsa_accum_offset {(vg+3)//4*4}
  .amdhsa_group_segment_fixed_size 0
  .amdhsa_kernarg_size 104
  .amdhsa_user_sgpr_count 2
  .amdhsa_user_sgpr_kernarg_segment_ptr 1
  .amdhsa_system_sgpr_workgroup_id_x 1
.end_amdhsa_kernel
.text""")
def start(name):
    e(f".globl {name}\n.p2align 8\n.type {name},@function\n{name}:")

start("k1_kernel")
e("""
  s_cmp_ge_u32 s2, 184
  s_cbranch_scc1 k1_end
  s_load_dwordx2 s[4:5], s[0:1], 0
  s_load_dwordx2 s[6:7], s[0:1], 24
  s_load_dwordx2 s[8:9], s[0:1], 48
  s_load_dwordx2 s[10:11], s[0:1], 56
  s_load_dwordx2 s[12:13], s[0:1], 96
  v_lshlrev_b32 v1, 2, v0
  v_lshrrev_b32 v19, 6, v0
  v_lshlrev_b32 v19, 2, v19
  s_waitcnt lgkmcnt(0)
  global_load_dword v2, v1, s[4:5]
  s_cmp_ge_u32 s2, 128
  s_cselect_b32 s16, s8, s6
  s_cselect_b32 s17, s9, s7
  s_mov_b32 s18, 0x2000
  s_mov_b32 s19, 0x400000
  s_cselect_b32 s18, 0xe00, s18
  s_cselect_b32 s19, 0x1c0000, s19 ; size
  s_cselect_b32 s20, 128, 0
  s_sub_u32 s20, s2, s20
  s_lshl_b32 s20, s20, 6
  s_mov_b32 s24, s16
  s_mov_b32 s25, s17
  s_mov_b32 s26, s19
  s_mov_b32 s27, 0x00020000
  v_lshrrev_b32 v4, 2, v0              ; r0
  v_mul_lo_u32 v5, v4, s18
  v_and_b32 v6, 3, v0
  v_lshl_add_u32 v5, v6, 4, v5
  v_add_u32 v5, s20, v5
  s_lshl_b32 s21, s18, 6
  s_mov_b32 s22, 0
""")
for i in range(8):
    e(f"  buffer_load_dwordx4 v[{32+4*i}:{35+4*i}], v5, s[24:27], s22 offen")
    e("  s_add_u32 s22, s22, s21")
e("""
  s_waitcnt vmcnt(8)
  v_and_b32 v3, 0xffff0000, v2
  v_lshlrev_b32 v2, 16, v2
  LNORM v2, v3
  s_cmp_ge_u32 s2, 128
  s_cbranch_scc0 k1_noln2
  LNORM v2, v3
k1_noln2:
  v_lshlrev_b32 v1, 3, v0
  ds_write_b64 v1, v[2:3] offset:9728
  s_waitcnt lgkmcnt(0)
  s_barrier
  v_lshlrev_b32 v4, 2, v4
""")
for i in range(8):
    e(f"  ds_read_b32 v{64+i}, v4 offset:{9728+256*i}")
for i in range(8): e(f"  v_mov_b32 v{8+i}, 0")
e("  s_waitcnt vmcnt(0) lgkmcnt(0)")
for i in range(8): e(f"  FMA8 8, {32+4*i}, v{64+i}")
red32()
e(f"""
  v_cmp_gt_u32 vcc, 32, v0
  s_and_saveexec_b64 s[30:31], vcc
  s_cbranch_execz k1_end
  s_cmp_ge_u32 s2, 128
  s_cbranch_scc1 k1_h
  v_cvt_pk_bf16_f32 v8, v8, v8
  s_lshl_b32 s3, s2, 6
  v_lshl_add_u32 v9, v0, 1, s3
  global_store_short v9, v8, s[12:13]
  s_branch k1_end
k1_h:
  s_sub_u32 s3, s2, 128
  s_lshl_b32 s3, s3, 6
  v_lshl_add_u32 v9, v0, 1, s3
  global_load_ushort v10, v9, s[10:11]
  RBF v8
  s_waitcnt vmcnt(0)
  v_lshlrev_b32 v10, 16, v10
  v_add_f32 v8, v8, v10
  RBF v8
  v_mul_f32 v10, v8, v8
  v_mul_f32 v10, v10, v8
  v_mov_b32 v11, 0x3d372713
  v_fma_f32 v10, v10, v11, v8
  v_mul_f32 v10, 0x40135761, v10       ; 2*sqrt(2/pi)*log2(e)
  v_exp_f32 v10, v10
  s_nop 0
  v_add_f32 v10, 1.0, v10
  v_rcp_f32 v10, v10
  s_nop 0
  v_fma_f32 v10, v10, -2.0, 2.0        ; 1+tanh
  v_mul_f32 v10, 0.5, v10
  v_mul_f32 v8, v8, v10
  RBF v8
  v_lshlrev_b32 v9, 1, v9
  v_add_u32 v9, {WS_H}, v9
  global_store_dword v9, v8, s[12:13]
k1_end:
  s_endpgm
""")
kd("k1_kernel",72)

start("k2_kernel")
e(f"""
  s_cmp_ge_u32 s2, 256
  s_cbranch_scc1 k2_end
  s_load_dwordx2 s[4:5], s[0:1], 8
  s_load_dwordx2 s[6:7], s[0:1], 16
  s_load_dwordx2 s[12:13], s[0:1], 96
  v_lshrrev_b32 v5, 6, v0
  v_and_b32 v1, 63, v0
  s_nop 0
  v_readfirstlane_b32 s3, v5
  s_and_b32 s14, s2, 7                 ; kvh
  s_lshr_b32 s15, s2, 3                ; chunk
  s_lshl_b32 s16, s14, 23
  s_lshl_b32 s17, s15, 18
  s_add_u32 s16, s16, s17
  s_lshl_b32 s17, s3, 15
  s_add_u32 s16, s16, s17
  s_waitcnt lgkmcnt(0)
  s_add_u32 s20, s4, s16
  s_addc_u32 s21, s5, 0
  s_mov_b32 s22, 32768
  s_mov_b32 s23, 0x00020000
  s_add_u32 s24, s6, s16
  s_addc_u32 s25, s7, 0
  s_mov_b32 s26, 32768
  s_mov_b32 s27, 0x00020000
  s_lshl_b32 s17, s14, 10
  s_add_u32 s28, s12, s17
  s_addc_u32 s29, s13, 0
  s_mov_b32 s30, 1024
  s_mov_b32 s31, 0x00020000
  v_and_b32 v5, 15, v1                 ; r / c
  v_lshrrev_b32 v6, 4, v1              ; g / rr
  v_lshlrev_b32 v2, 8, v5
  v_lshl_add_u32 v2, v6, 4, v2
  v_lshlrev_b32 v7, 1, v6
  v_xor_b32 v7, v5, v7
  v_lshlrev_b32 v7, 4, v7
  v_lshl_add_u32 v3, v6, 8, v7         ; V even
  v_xor_b32 v4, 0x80, v3               ; V odd
  s_lshl_b32 s33, s3, 14
  v_lshrrev_b32 v7, 2, v5              ; r'
  v_lshl_add_u32 v110, v6, 2, v7       ; rho = 4g+r'
  v_and_b32 v111, 7, v110
  v_lshlrev_b32 v111, 1, v111          ; swz
  v_lshlrev_b32 v110, 8, v110
  v_add_u32 v110, s33, v110
  v_and_b32 v112, 1, v5
  v_lshl_add_u32 v110, v112, 3, v110
  v_bfe_u32 v112, v5, 1, 1             ; c'>>1
""")
for nb in range(8):
    e(f"  v_or_b32 v113, {2*nb}, v112\n  v_xor_b32 v113, v113, v111\n  v_lshl_add_u32 v{8+nb}, v113, 4, v110")
for c in range(4):
    e(f"  buffer_load_dwordx4 v[{16+4*c}:{19+4*c}], v2, s[28:31], 0 offen offset:{64*c}")
for k in range(8): e(f"  s_mov_b32 s{40+k}, {4096*k}")
def issue(it):
    kb=32+32*(it&1)
    for t in range(2):
        for c in range(4):
            r=kb+16*t+4*c
            e(f"  buffer_load_dwordx4 v[{r}:{r+3}], v2, s[20:23], s{40+2*it+t} offen offset:{64*c}")
    for h in range(2):
        e(f"  s_add_u32 s34, s33, {8192*(it&1)+4096*h}\n  s_mov_b32 m0, s34\n  s_nop 0")
        for k in range(4):
            e(f"  buffer_load_dwordx4 v{3+(k&1)}, s[24:27], s{40+2*it+h} offen offset:{1024*k} lds")
issue(0); issue(1)
for i in range(32): e(f"  v_mov_b32 v{160+i}, 0")
e("  v_mov_b32 v108, 0xff800000\n  v_mov_b32 v109, 0\n  s_mov_b32 s35, 0x3e0293ee")
for it in range(4):
    kb=32+32*(it&1)
    e(f"  s_waitcnt vmcnt({16 if it<3 else 0})")
    for t in range(2):
        for i in range(4): e(f"  v_mov_b32 v{96+4*t+i}, 0")
    e("  s_nop 1")
    for t in range(2):
        for c in range(4):
            r=kb+16*t+4*c
            e(f"  v_mfma_f32_16x16x32_bf16 v[{96+4*t}:{99+4*t}], v[{r}:{r+3}], v[{16+4*c}:{19+4*c}], v[{96+4*t}:{99+4*t}]")
    for nb in range(8):
        for t in range(2):
            r=128+4*nb+2*t
            e(f"  ds_read_b64_tr_b16 v[{r}:{r+1}], v{8+nb} offset:{8192*(it&1)+4096*t}")
    e("""  s_nop 7
  v_max3_f32 v110, v96, v97, v98
  v_max3_f32 v111, v99, v100, v101
  v_max3_f32 v110, v110, v102, v103
  v_max_f32 v110, v110, v111
  v_mov_b32 v111, v110
  s_nop 1
  v_permlane16_swap_b32 v110, v111
  v_max_f32 v110, v110, v111
  v_mov_b32 v111, v110
  s_nop 1
  v_permlane32_swap_b32 v110, v111
  v_max3_f32 v110, v110, v111, v108    ; m_new
  v_sub_f32 v111, v108, v110
  v_mul_f32 v111, s35, v111
  v_exp_f32 v111, v111                 ; alpha
  v_mov_b32 v108, v110
  v_mul_f32 v112, s35, v110""")
    for i in range(8):
        e(f"  v_fma_f32 v{96+i}, v{96+i}, s35, -v112\n  v_exp_f32 v{96+i}, v{96+i}")
    e("  s_nop 0\n  v_mul_f32 v109, v109, v111")
    for i in range(8): e(f"  v_add_f32 v109, v109, v{96+i}")
    for i in range(4): e(f"  v_cvt_pk_bf16_f32 v{104+i}, v{96+2*i}, v{97+2*i}")
    for i in range(4): e(f"  v_readlane_b32 s{50+i}, v111, {i}")
    e("  s_nop 1")
    for nb in range(8):
        for i in range(4): e(f"  v_mul_f32 v{160+4*nb+i}, s{50+i}, v{160+4*nb+i}")
    e("  s_waitcnt lgkmcnt(0)\n  s_nop 1")
    for nb in range(8):
        e(f"  v_mfma_f32_16x16x32_bf16 v[{160+4*nb}:{163+4*nb}], v[104:107], v[{128+4*nb}:{131+4*nb}], v[{160+4*nb}:{163+4*nb}]")
    if it<2:
        e("  s_nop 7")
        issue(it+2)
CB=131072
e(f"""
  s_nop 7
  s_nop 7
  v_mov_b32 v111, v109
  s_nop 1
  v_permlane16_swap_b32 v109, v111
  v_add_f32 v109, v109, v111
  v_mov_b32 v111, v109
  s_nop 1
  v_permlane32_swap_b32 v109, v111
  v_add_f32 v109, v109, v111
  s_mul_i32 s34, s3, 2080
  s_add_u32 s34, s34, {CB}
  v_lshl_add_u32 v5, v1, 2, s34
  v_cmp_gt_u32 vcc, 16, v1
  s_and_saveexec_b64 s[36:37], vcc
""")
for nb in range(8):
    for i in range(4): e(f"  ds_write_b32 v5, v{160+4*nb+i} offset:{512*i+64*nb}")
e(f"""
  v_cmp_gt_u32 vcc, 4, v1
  s_and_b64 exec, exec, vcc
  ds_write_b32 v5, v108 offset:2048
  ds_write_b32 v5, v109 offset:2064
  s_mov_b64 exec, s[36:37]
  s_waitcnt lgkmcnt(0)
  s_barrier
  v_lshlrev_b32 v5, 2, v0
  v_add_u32 v5, {CB}, v5
  v_lshrrev_b32 v6, 7, v0
  v_lshlrev_b32 v6, 2, v6
  v_add_u32 v6, {CB+2048}, v6
""")
for w in range(8):
    e(f"  ds_read_b32 v{16+w}, v5 offset:{2080*w}\n  ds_read_b32 v{24+w}, v6 offset:{2080*w}\n  ds_read_b32 v{32+w}, v6 offset:{2080*w+16}")
e("  s_waitcnt lgkmcnt(0)\n  v_max3_f32 v40, v24, v25, v26\n  v_max3_f32 v40, v40, v27, v28\n  v_max3_f32 v40, v40, v29, v30\n  v_max_f32 v40, v40, v31\n  v_mov_b32 v41, 0\n  v_mov_b32 v42, 0")
for w in range(8):
    e(f"  v_sub_f32 v43, v{24+w}, v40\n  v_mul_f32 v43, s35, v43\n  v_exp_f32 v43, v43\n  s_nop 0\n  v_fmac_f32 v41, v43, v{16+w}\n  v_fmac_f32 v42, v43, v{32+w}")
e(f"""
  s_lshl_b32 s16, s14, 5
  s_add_u32 s16, s16, s15              ; kvh*32+chunk
  s_lshl_b32 s17, s16, 11
  s_add_u32 s17, s17, {WS_PO}
  v_lshl_add_u32 v5, v0, 2, s17
  global_store_dword v5, v41, s[12:13]
  v_and_b32 v6, 127, v0
  v_cmp_eq_u32 vcc, 0, v6
  s_and_saveexec_b64 s[36:37], vcc
  s_lshl_b32 s17, s16, 5
  s_add_u32 s17, s17, {WS_ML}
  v_lshrrev_b32 v6, 5, v0
  v_add_u32 v6, s17, v6
  global_store_dword v6, v40, s[12:13]
  global_store_dword v6, v42, s[12:13] offset:16
k2_end:
  s_endpgm
""")
kd("k2_kernel",192)

start("k3_kernel")
e(f"""
  s_cmp_ge_u32 s2, 80
  s_cbranch_scc1 k3_end
  s_load_dwordx2 s[4:5], s[0:1], 0
  s_load_dwordx2 s[6:7], s[0:1], 32
  s_load_dwordx2 s[8:9], s[0:1], 64
  s_load_dwordx2 s[10:11], s[0:1], 72
  s_load_dwordx2 s[12:13], s[0:1], 96
  s_load_dwordx2 s[14:15], s[0:1], 80
  s_load_dwordx2 s[16:17], s[0:1], 88
  s_mov_b32 s35, 0x3e0293ee
  s_cmp_ge_u32 s2, 64
  s_waitcnt lgkmcnt(0)
  s_cbranch_scc1 k3_g
  s_and_b32 s18, s2, 7
  s_lshr_b32 s19, s2, 3                ; kvh
  s_mov_b32 s24, s6
  s_mov_b32 s25, s7
  s_mov_b32 s26, 0x400000
  s_mov_b32 s27, 0x00020000
  v_lshrrev_b32 v4, 3, v0
  v_lshlrev_b32 v5, 10, v4
  v_and_b32 v6, 7, v0
  v_lshl_add_u32 v5, v6, 4, v5
  s_lshl_b32 s20, s19, 19
  s_lshl_b32 s21, s18, 7
  s_add_u32 s20, s20, s21
""")
for i in range(16):
    e(f"  buffer_load_dwordx4 v[{64+4*i}:{67+4*i}], v5, s[24:27], s20 offen\n  s_add_u32 s20, s20, 0x8000")
e(f"""
  s_lshl_b32 s20, s19, 10
  s_add_u32 s20, s20, {WS_ML}
  v_lshl_add_u32 v7, v0, 2, s20
  global_load_dword v8, v7, s[12:13]
  v_lshlrev_b32 v7, 2, v0
  s_waitcnt vmcnt(0)
  ds_write_b32 v7, v8 offset:9728
  s_lshl_b32 s20, s19, 16
  s_add_u32 s20, s20, {WS_PO}
  v_lshl_add_u32 v7, v0, 3, s20
""")
for c in range(32):
    e(f"  global_load_dwordx2 v[{128+2*c}:{129+2*c}], v7, s[12:13] offset:0\n  v_add_u32 v7, 0x800, v7")
e(f"""
  s_waitcnt lgkmcnt(0)
  s_barrier
  v_lshrrev_b32 v7, 6, v0
  v_lshlrev_b32 v7, 2, v7
  v_mov_b32 v9, 0xff800000
""")
for c in range(32):
    e(f"  ds_read_b32 v{32+c}, v7 offset:{9728+32*c}")
e("  s_waitcnt lgkmcnt(0)")
for c in range(32): e(f"  v_max_f32 v9, v9, v{32+c}")
e("  v_mov_b32 v10, 0\n  v_mov_b32 v11, 0\n  v_mov_b32 v12, 0")
for c in range(32):
    e(f"  v_sub_f32 v{32+c}, v{32+c}, v9\n  v_mul_f32 v{32+c}, s35, v{32+c}\n  v_exp_f32 v{32+c}, v{32+c}\n  ds_read_b32 v13, v7 offset:{9728+32*c+16}\n  s_waitcnt lgkmcnt(0)\n  v_fmac_f32 v10, v13, v{32+c}")
e("  s_waitcnt vmcnt(0)")
for c in range(32):
    e(f"  v_fmac_f32 v11, v{32+c}, v{128+2*c}\n  v_fmac_f32 v12, v{32+c}, v{129+2*c}")
e(f"""
  v_rcp_f32 v10, v10
  s_nop 0
  v_mul_f32 v11, v11, v10
  v_mul_f32 v12, v12, v10
  RBF v11
  RBF v12
  v_lshlrev_b32 v7, 3, v0
  ds_write_b32 v7, v11 offset:0
  ds_write_b32 v7, v12 offset:4
  s_waitcnt lgkmcnt(0)
  s_barrier
  v_lshlrev_b32 v4, 2, v4
""")
for i in range(16): e(f"  ds_read_b32 v{32+i}, v4 offset:{128*i}")
for i in range(8): e(f"  v_mov_b32 v{8+i}, 0")
e("  s_waitcnt lgkmcnt(0)")
for i in range(16): e(f"  FMA8 8, {64+4*i}, v{32+i}")
e(f"""
  s_barrier
  v_lshlrev_b32 v16, 5, v0
  ds_write_b128 v16, v[8:11]
  ds_write_b128 v16, v[12:15] offset:16
  s_waitcnt lgkmcnt(0)
  s_barrier
  v_and_b32 v16, 63, v0
  v_lshrrev_b32 v17, 6, v0
  v_lshlrev_b32 v17, 11, v17
  v_lshl_add_u32 v16, v16, 2, v17
""")
for i in range(8): e(f"  ds_read_b32 v{8+i}, v16 offset:{256*i}")
e(f"""
  s_waitcnt lgkmcnt(0)
  v_add_f32 v8, v8, v9
  v_add_f32 v10, v10, v11
  v_add_f32 v12, v12, v13
  v_add_f32 v14, v14, v15
  v_add_f32 v8, v8, v10
  v_add_f32 v12, v12, v14
  v_add_f32 v8, v8, v12
  v_lshlrev_b32 v16, 2, v0
  ds_write_b32 v16, v8 offset:8448
  s_waitcnt lgkmcnt(0)
  s_barrier
  v_cmp_gt_u32 vcc, 64, v0
  s_and_saveexec_b64 s[30:31], vcc
  s_cbranch_execz k3_end
  ds_read_b32 v8, v16 offset:8448
  ds_read_b32 v9, v16 offset:8704
  ds_read_b32 v10, v16 offset:8960
  ds_read_b32 v11, v16 offset:9216
  s_waitcnt lgkmcnt(0)
  v_add_f32 v8, v8, v9
  v_add_f32 v10, v10, v11
  v_add_f32 v8, v8, v10
  s_lshl_b32 s20, s19, 11
  s_lshl_b32 s21, s18, 8
  s_add_u32 s20, s20, s21
  s_add_u32 s20, s20, {WS_S3}
  v_add_u32 v16, s20, v16
  global_store_dword v16, v8, s[12:13] sc1
  s_branch k3_arrive
k3_g:
  s_sub_u32 s18, s2, 64
  s_mov_b32 s24, s8
  s_mov_b32 s25, s9
  s_mov_b32 s26, 0x1c0000
  s_mov_b32 s27, 0x00020000
  v_lshrrev_b32 v4, 2, v0
  v_lshlrev_b32 v5, 10, v4
  v_and_b32 v6, 3, v0
  v_lshl_add_u32 v5, v6, 4, v5
  s_lshl_b32 s20, s18, 6
""")
for i in range(28):
    e(f"  buffer_load_dwordx4 v[{64+4*i}:{67+4*i}], v5, s[24:27], s20 offen\n  s_add_u32 s20, s20, 0x10000")
e(f"  v_lshlrev_b32 v4, 2, v4\n  v_add_u32 v4, {WS_H}, v4")
for i in range(28): e(f"  global_load_dword v{32+i}, v4, s[12:13]\n  v_add_u32 v4, 0x100, v4")
for i in range(8): e(f"  v_mov_b32 v{8+i}, 0")
e("  s_waitcnt vmcnt(0)")
for i in range(28): e(f"  FMA8 8, {64+4*i}, v{32+i}")
red32()
e(f"""
  v_cmp_gt_u32 vcc, 32, v0
  s_and_saveexec_b64 s[30:31], vcc
  s_cbranch_execz k3_end
  s_lshl_b32 s20, s18, 6
  v_lshl_add_u32 v9, v0, 1, s20
  global_load_ushort v10, v9, s[10:11]
  RBF v8
  s_waitcnt vmcnt(0)
  v_lshlrev_b32 v10, 16, v10
  v_add_f32 v8, v8, v10
  RBF v8
  v_mul_f32 v10, 0xbfb8aa3b, v8
  v_exp_f32 v10, v10
  s_nop 0
  v_add_f32 v10, 1.0, v10
  v_rcp_f32 v10, v10
  s_nop 0
  v_mul_f32 v8, v8, v10
  RBF v8
  v_lshlrev_b32 v9, 1, v9
  v_add_u32 v9, {WS_G}, v9
  global_store_dword v9, v8, s[12:13] sc1
  s_lshr_b32 s18, s18, 1
k3_arrive:
  s_waitcnt vmcnt(0)
  s_lshl_b32 s20, s18, 2
  v_mov_b32 v9, s20
  v_mov_b32 v10, 1
  s_mov_b64 s[32:33], exec
  s_mov_b64 exec, 1
  global_atomic_add v11, v9, v10, s[16:17] sc0
  s_waitcnt vmcnt(0)
  v_readfirstlane_b32 s21, v11
  s_mov_b64 exec, -1
  s_cmp_eq_u32 s21, 9
  s_cbranch_scc0 k3_end
  v_and_b32 v1, 63, v0
  s_lshl_b32 s20, s18, 8
  v_lshl_add_u32 v9, v1, 2, s20
  v_add_u32 v10, {WS_S3}, v9
  v_add_u32 v11, {WS_G}, v9
  global_load_dword v20, v11, s[12:13] sc1
""")
for r in range(8): e(f"  global_load_dword v{24+r}, v10, s[12:13] sc1\n  v_add_u32 v10, 0x800, v10")
e(f"""
  v_lshrrev_b32 v9, 1, v9
  global_load_ushort v21, v9, s[4:5]
  s_waitcnt vmcnt(0)
  v_add_f32 v24, v24, v25
  v_add_f32 v26, v26, v27
  v_add_f32 v28, v28, v29
  v_add_f32 v30, v30, v31
  v_add_f32 v24, v24, v26
  v_add_f32 v28, v28, v30
  v_add_f32 v24, v24, v28
  RBF v24
  v_mul_f32 v24, v24, v20
  RBF v24
  v_lshlrev_b32 v21, 16, v21
  v_add_f32 v24, v24, v21
  v_cvt_pk_bf16_f32 v24, v24, v24
  global_store_short v9, v24, s[14:15]
k3_end:
  s_endpgm
""")
kd("k3_kernel",192)
open(f"cdna_kernels/{NAME}.s","w").write("\n".join(L)+"\n")
```

```python
import sys
L=[]
import os
EXP=os.environ.get('EXP','')
def e(s): L.append(s)
NAME="recurrent_scan__gqa_block_cached__mixer_channel_mlp__decode"
hdr=open(f"cdna_kernels/{NAME}.s.ref").read().split("; Override launch")[0]
WS_Q=0; WS_H=8192; WS_ML=32768; WS_PO=65536; WS_S3=1<<20; WS_G=(1<<20)+65536
e(hdr.rstrip())
e("; @launch kernel=k1_kernel grid=(184,1,1) block=(256,1,1) lds=12288")
e("; @launch kernel=k2_kernel grid=(256,1,1) block=(512,1,1) lds=147968")
e("; @launch kernel=k3_kernel grid=(80,1,1) block=(256,1,1) lds=12288")
e('.amdgcn_target "amdgcn-amd-amdhsa--gfx950"')
e(".text")
e("""
.macro WSUM v, t
  s_nop 1
  v_add_f32_dpp \\v, \\v, \\v quad_perm:[1,0,3,2] row_mask:0xf bank_mask:0xf
  s_nop 1
  v_add_f32_dpp \\v, \\v, \\v quad_perm:[2,3,0,1] row_mask:0xf bank_mask:0xf
  s_nop 1
  v_add_f32_dpp \\v, \\v, \\v row_half_mirror row_mask:0xf bank_mask:0xf
  s_nop 1
  v_add_f32_dpp \\v, \\v, \\v row_mirror row_mask:0xf bank_mask:0xf
  v_mov_b32 \\t, \\v
  s_nop 1
  v_permlane16_swap_b32 \\v, \\t
  v_add_f32 \\v, \\v, \\t
  v_mov_b32 \\t, \\v
  s_nop 1
  v_permlane32_swap_b32 \\v, \\t
  v_add_f32 \\v, \\v, \\t
.endm
.macro RBF v
  v_cvt_pk_bf16_f32 \\v, \\v, \\v
  v_lshlrev_b32 \\v, 16, \\v
.endm
.macro BSUM v, t, q, vw, lo
  WSUM \\v, \\t
  s_barrier
  ds_write_b32 \\vw, \\v offset:\\lo
  s_waitcnt lgkmcnt(0)
  s_barrier
  v_mov_b32 \\t, 0
  ds_read_b128 v[\\q:\\q+3], \\t offset:\\lo
  s_waitcnt lgkmcnt(0)
  v_add_f32 \\v, v[\\q], v[\\q+1]
  v_add_f32 \\t, v[\\q+2], v[\\q+3]
  v_add_f32 \\v, \\v, \\t
.endm
.macro LNORM a, b
  v_add_f32 v20, \\a, \\b
  BSUM v20, v21, 24, v19, 8192
  v_mul_f32 v20, 0x3b000000, v20      ; mean (1/512)
  v_sub_f32 v22, \\a, v20
  v_sub_f32 v23, \\b, v20
  v_mul_f32 v22, v22, v22
  v_fmac_f32 v22, v23, v23
  BSUM v22, v21, 24, v19, 8192
  v_mul_f32 v22, 0x3b000000, v22      ; var
  RBF v22
  RBF v20
  v_add_f32 v22, 0x3727c5ac, v22      ; + 1e-5
  RBF v22
  v_sqrt_f32 v22, v22
  s_nop 0
  RBF v22
  v_rcp_f32 v22, v22
  v_sub_f32 \\a, \\a, v20
  v_sub_f32 \\b, \\b, v20
  RBF \\a
  RBF \\b
  v_mul_f32 \\a, \\a, v22
  v_mul_f32 \\b, \\b, v22
  RBF \\a
  RBF \\b
.endm
.macro FMA8 a, d, x
  v_lshlrev_b32 v28, 16, v[\\d]
  v_and_b32 v29, 0xffff0000, v[\\d]
  v_fmac_f32 v[\\a], v28, \\x
  v_fmac_f32 v[\\a+1], v29, \\x
  v_lshlrev_b32 v28, 16, v[\\d+1]
  v_and_b32 v29, 0xffff0000, v[\\d+1]
  v_fmac_f32 v[\\a+2], v28, \\x
  v_fmac_f32 v[\\a+3], v29, \\x
  v_lshlrev_b32 v28, 16, v[\\d+2]
  v_and_b32 v29, 0xffff0000, v[\\d+2]
  v_fmac_f32 v[\\a+4], v28, \\x
  v_fmac_f32 v[\\a+5], v29, \\x
  v_lshlrev_b32 v28, 16, v[\\d+3]
  v_and_b32 v29, 0xffff0000, v[\\d+3]
  v_fmac_f32 v[\\a+6], v28, \\x
  v_fmac_f32 v[\\a+7], v29, \\x
.endm
""")
def red32():
    e("""
  s_barrier
  v_lshlrev_b32 v16, 5, v0
  ds_write_b128 v16, v[8:11]
  ds_write_b128 v16, v[12:15] offset:16
  s_waitcnt lgkmcnt(0)
  s_barrier
  v_and_b32 v16, 31, v0
  v_lshrrev_b32 v17, 5, v0
  v_lshlrev_b32 v17, 10, v17
  v_lshl_add_u32 v16, v16, 2, v17
  ds_read_b32 v8, v16
  ds_read_b32 v9, v16 offset:128
  ds_read_b32 v10, v16 offset:256
  ds_read_b32 v11, v16 offset:384
  ds_read_b32 v12, v16 offset:512
  ds_read_b32 v13, v16 offset:640
  ds_read_b32 v14, v16 offset:768
  ds_read_b32 v15, v16 offset:896
  s_waitcnt lgkmcnt(0)
  v_add_f32 v8, v8, v9
  v_add_f32 v10, v10, v11
  v_add_f32 v12, v12, v13
  v_add_f32 v14, v14, v15
  v_add_f32 v8, v8, v10
  v_add_f32 v12, v12, v14
  v_add_f32 v8, v8, v12
  v_lshlrev_b32 v16, 2, v0
  ds_write_b32 v16, v8 offset:8448
  s_waitcnt lgkmcnt(0)
  s_barrier
  v_and_b32 v16, 31, v0
  v_lshlrev_b32 v16, 2, v16
  ds_read_b32 v8, v16 offset:8448
  ds_read_b32 v9, v16 offset:8576
  ds_read_b32 v10, v16 offset:8704
  ds_read_b32 v11, v16 offset:8832
  ds_read_b32 v12, v16 offset:8960
  ds_read_b32 v13, v16 offset:9088
  ds_read_b32 v14, v16 offset:9216
  ds_read_b32 v15, v16 offset:9344
  s_waitcnt lgkmcnt(0)
  v_add_f32 v8, v8, v9
  v_add_f32 v10, v10, v11
  v_add_f32 v12, v12, v13
  v_add_f32 v14, v14, v15
  v_add_f32 v8, v8, v10
  v_add_f32 v12, v12, v14
  v_add_f32 v8, v8, v12
""")
def kd(name,vg):
    e(f""".section .rodata,"a"
.p2align 6
.amdhsa_kernel {name}
  .amdhsa_next_free_vgpr {vg}
  .amdhsa_next_free_sgpr 64
  .amdhsa_accum_offset {(vg+3)//4*4}
  .amdhsa_group_segment_fixed_size 0
  .amdhsa_kernarg_size 104
  .amdhsa_user_sgpr_count 2
  .amdhsa_user_sgpr_kernarg_segment_ptr 1
  .amdhsa_system_sgpr_workgroup_id_x 1
.end_amdhsa_kernel
.text""")
def start(name):
    e(f".globl {name}\n.p2align 8\n.type {name},@function\n{name}:")

start("k1_kernel")
e("""
  s_cmp_ge_u32 s2, 184
  s_cbranch_scc1 k1_end
  s_load_dwordx2 s[4:5], s[0:1], 0
  s_load_dwordx2 s[6:7], s[0:1], 24
  s_load_dwordx2 s[8:9], s[0:1], 48
  s_load_dwordx2 s[10:11], s[0:1], 56
  s_load_dwordx2 s[12:13], s[0:1], 96
  v_lshlrev_b32 v1, 2, v0
  v_lshrrev_b32 v19, 6, v0
  v_lshlrev_b32 v19, 2, v19
  s_waitcnt lgkmcnt(0)
  global_load_dword v2, v1, s[4:5]
  s_cmp_ge_u32 s2, 128
  s_cselect_b32 s16, s8, s6
  s_cselect_b32 s17, s9, s7
  s_mov_b32 s18, 0x2000
  s_mov_b32 s19, 0x400000
  s_cselect_b32 s18, 0xe00, s18
  s_cselect_b32 s19, 0x1c0000, s19 ; size
  s_cselect_b32 s20, 128, 0
  s_sub_u32 s20, s2, s20
  s_lshl_b32 s20, s20, 6
  s_mov_b32 s24, s16
  s_mov_b32 s25, s17
  s_mov_b32 s26, s19
  s_mov_b32 s27, 0x00020000
  v_lshrrev_b32 v4, 2, v0              ; r0
  v_mul_lo_u32 v5, v4, s18
  v_and_b32 v6, 3, v0
  v_lshl_add_u32 v5, v6, 4, v5
  v_add_u32 v5, s20, v5
  s_lshl_b32 s21, s18, 6
  s_mov_b32 s22, 0
""")
for i in range(8):
    e(f"  buffer_load_dwordx4 v[{32+4*i}:{35+4*i}], v5, s[24:27], s22 offen")
    e("  s_add_u32 s22, s22, s21")
e("""
  s_waitcnt vmcnt(8)
  v_and_b32 v3, 0xffff0000, v2
  v_lshlrev_b32 v2, 16, v2
  LNORM v2, v3
  s_cmp_ge_u32 s2, 128
  s_cbranch_scc0 k1_noln2
  LNORM v2, v3
k1_noln2:
  v_lshlrev_b32 v1, 3, v0
  ds_write_b64 v1, v[2:3] offset:9728
  s_waitcnt lgkmcnt(0)
  s_barrier
  v_lshlrev_b32 v4, 2, v4
""")
for i in range(8):
    e(f"  ds_read_b32 v{64+i}, v4 offset:{9728+256*i}")
for i in range(8): e(f"  v_mov_b32 v{8+i}, 0")
e("  s_waitcnt vmcnt(0) lgkmcnt(0)")
for i in range(8): e(f"  FMA8 8, {32+4*i}, v{64+i}")
red32()
e(f"""
  v_cmp_gt_u32 vcc, 32, v0
  s_and_saveexec_b64 s[30:31], vcc
  s_cbranch_execz k1_end
  s_cmp_ge_u32 s2, 128
  s_cbranch_scc1 k1_h
  v_cvt_pk_bf16_f32 v8, v8, v8
  s_lshl_b32 s3, s2, 6
  v_lshl_add_u32 v9, v0, 1, s3
  global_store_short v9, v8, s[12:13]
  s_branch k1_end
k1_h:
  s_sub_u32 s3, s2, 128
  s_lshl_b32 s3, s3, 6
  v_lshl_add_u32 v9, v0, 1, s3
  global_load_ushort v10, v9, s[10:11]
  RBF v8
  s_waitcnt vmcnt(0)
  v_lshlrev_b32 v10, 16, v10
  v_add_f32 v8, v8, v10
  RBF v8
  v_mul_f32 v10, v8, v8
  v_mul_f32 v10, v10, v8
  v_mov_b32 v11, 0x3d372713
  v_fma_f32 v10, v10, v11, v8
  v_mul_f32 v10, 0x40135761, v10       ; 2*sqrt(2/pi)*log2(e)
  v_exp_f32 v10, v10
  s_nop 0
  v_add_f32 v10, 1.0, v10
  v_rcp_f32 v10, v10
  s_nop 0
  v_fma_f32 v10, v10, -2.0, 2.0        ; 1+tanh
  v_mul_f32 v10, 0.5, v10
  v_mul_f32 v8, v8, v10
  RBF v8
  v_lshlrev_b32 v9, 1, v9
  v_add_u32 v9, {WS_H}, v9
  global_store_dword v9, v8, s[12:13]
k1_end:
  s_endpgm
""")
kd("k1_kernel",72)

start("k2_kernel")
e(f"""
  s_cmp_ge_u32 s2, 256
  s_cbranch_scc1 k2_end
  s_load_dwordx2 s[4:5], s[0:1], 8
  s_load_dwordx2 s[6:7], s[0:1], 16
  s_load_dwordx2 s[12:13], s[0:1], 96
  v_lshrrev_b32 v5, 6, v0
  v_and_b32 v1, 63, v0
  s_nop 0
  v_readfirstlane_b32 s3, v5
  s_and_b32 s14, s2, 7                 ; kvh
  s_lshr_b32 s15, s2, 3                ; chunk
  s_lshl_b32 s16, s14, 23
  s_lshl_b32 s17, s15, 18
  s_add_u32 s16, s16, s17
  s_lshl_b32 s17, s3, 13
  s_add_u32 s16, s16, s17
  s_waitcnt lgkmcnt(0)
  s_add_u32 s20, s4, s16
  s_addc_u32 s21, s5, 0
  s_mov_b32 s22, 0x38000
  s_mov_b32 s23, 0x00020000
  s_add_u32 s24, s6, s16
  s_addc_u32 s25, s7, 0
  s_mov_b32 s26, 0x38000
  s_mov_b32 s27, 0x00020000
  s_lshl_b32 s17, s14, 10
  s_add_u32 s28, s12, s17
  s_addc_u32 s29, s13, 0
  s_mov_b32 s30, 1024
  s_mov_b32 s31, 0x00020000
  v_and_b32 v5, 15, v1                 ; r / c
  v_lshrrev_b32 v6, 4, v1              ; g / rr
  v_lshlrev_b32 v2, 8, v5
  v_lshl_add_u32 v2, v6, 4, v2
  v_lshlrev_b32 v7, 1, v6
  v_xor_b32 v7, v5, v7
  v_lshlrev_b32 v7, 4, v7
  v_lshl_add_u32 v3, v6, 8, v7         ; V even
  v_xor_b32 v4, 0x80, v3               ; V odd
  s_lshl_b32 s33, s3, 14
  v_lshrrev_b32 v7, 2, v5              ; r'
  v_lshl_add_u32 v110, v6, 2, v7       ; rho = 4g+r'
  v_and_b32 v111, 7, v110
  v_lshlrev_b32 v111, 1, v111          ; swz
  v_lshlrev_b32 v110, 8, v110
  v_add_u32 v110, s33, v110
  v_and_b32 v112, 1, v5
  v_lshl_add_u32 v110, v112, 3, v110
  v_bfe_u32 v112, v5, 1, 1             ; c'>>1
""")
for nb in range(8):
    e(f"  v_or_b32 v113, {2*nb}, v112\n  v_xor_b32 v113, v113, v111\n  v_lshl_add_u32 v{8+nb}, v113, 4, v110")
for c in range(4):
    e(f"  buffer_load_dwordx4 v[{16+4*c}:{19+4*c}], v2, s[28:31], 0 offen offset:{64*c}" + (" nt" if EXP!="xx" else ""))
for k in range(8): e(f"  s_mov_b32 s{40+k}, {4096*(k&1)+65536*(k>>1)}")
def issue(it):
    kb=32+32*(it&1)
    for t in range(2):
        for c in range(4):
            r=kb+16*t+4*c
            if EXP!="noK": e(f"  buffer_load_dwordx4 v[{r}:{r+3}], v2, s[20:23], s{40+2*it+t} offen offset:{64*c}" + (" nt" if EXP!="xx" else ""))
    for h in range(2):
        e(f"  s_add_u32 s34, s33, {8192*(it&1)+4096*h}\n  s_mov_b32 m0, s34\n  s_nop 0")
        for k in range(4):
            if EXP!="noV": e(f"  buffer_load_dwordx4 v{3+(k&1)}, s[24:27], s{40+2*it+h} offen offset:{1024*k}" + (" nt" if EXP!="xx" else "") + " lds")
issue(0); issue(1)
for i in range(32): e(f"  v_mov_b32 v{160+i}, 0")
e("  v_mov_b32 v108, 0xff800000\n  v_mov_b32 v109, 0\n  s_mov_b32 s35, 0x3e0293ee")
for it in range(4):
    kb=32+32*(it&1)
    e(f"  s_waitcnt vmcnt({16 if it<3 else 0})")
    for t in range(2):
        for i in range(4): e(f"  v_mov_b32 v{96+4*t+i}, 0")
    e("  s_nop 1")
    for t in range(2):
        for c in range(4):
            r=kb+16*t+4*c
            e(f"  v_mfma_f32_16x16x32_bf16 v[{96+4*t}:{99+4*t}], v[{r}:{r+3}], v[{16+4*c}:{19+4*c}], v[{96+4*t}:{99+4*t}]")
    for nb in range(8):
        for t in range(2):
            r=128+4*nb+2*t
            e(f"  ds_read_b64_tr_b16 v[{r}:{r+1}], v{8+nb} offset:{8192*(it&1)+4096*t}")
    e("""  s_nop 7
  v_max3_f32 v110, v96, v97, v98
  v_max3_f32 v111, v99, v100, v101
  v_max3_f32 v110, v110, v102, v103
  v_max_f32 v110, v110, v111
  v_mov_b32 v111, v110
  s_nop 1
  v_permlane16_swap_b32 v110, v111
  v_max_f32 v110, v110, v111
  v_mov_b32 v111, v110
  s_nop 1
  v_permlane32_swap_b32 v110, v111
  v_max3_f32 v110, v110, v111, v108    ; m_new
  v_sub_f32 v111, v108, v110
  v_mul_f32 v111, s35, v111
  v_exp_f32 v111, v111                 ; alpha
  v_mov_b32 v108, v110
  v_mul_f32 v112, s35, v110""")
    for i in range(8):
        e(f"  v_fma_f32 v{96+i}, v{96+i}, s35, -v112\n  v_exp_f32 v{96+i}, v{96+i}")
    e("  s_nop 0\n  v_mul_f32 v109, v109, v111")
    for i in range(8): e(f"  v_add_f32 v109, v109, v{96+i}")
    for i in range(4): e(f"  v_cvt_pk_bf16_f32 v{104+i}, v{96+2*i}, v{97+2*i}")
    for i in range(4): e(f"  v_readlane_b32 s{50+i}, v111, {i}")
    e("  s_nop 1")
    for nb in range(8):
        for i in range(4): e(f"  v_mul_f32 v{160+4*nb+i}, s{50+i}, v{160+4*nb+i}")
    e("  s_waitcnt lgkmcnt(0)\n  s_nop 1")
    for nb in range(8):
        e(f"  v_mfma_f32_16x16x32_bf16 v[{160+4*nb}:{163+4*nb}], v[104:107], v[{128+4*nb}:{131+4*nb}], v[{160+4*nb}:{163+4*nb}]")
    if it<2:
        e("  s_nop 7")
        issue(it+2)
CB=131072
e(f"""
  s_nop 7
  s_nop 7
  v_mov_b32 v111, v109
  s_nop 1
  v_permlane16_swap_b32 v109, v111
  v_add_f32 v109, v109, v111
  v_mov_b32 v111, v109
  s_nop 1
  v_permlane32_swap_b32 v109, v111
  v_add_f32 v109, v109, v111
  s_mul_i32 s34, s3, 2080
  s_add_u32 s34, s34, {CB}
  v_lshl_add_u32 v5, v1, 2, s34
  v_cmp_gt_u32 vcc, 16, v1
  s_and_saveexec_b64 s[36:37], vcc
""")
for nb in range(8):
    for i in range(4): e(f"  ds_write_b32 v5, v{160+4*nb+i} offset:{512*i+64*nb}")
e(f"""
  v_cmp_gt_u32 vcc, 4, v1
  s_and_b64 exec, exec, vcc
  ds_write_b32 v5, v108 offset:2048
  ds_write_b32 v5, v109 offset:2064
  s_mov_b64 exec, s[36:37]
  s_waitcnt lgkmcnt(0)
  s_barrier
  v_lshlrev_b32 v5, 2, v0
  v_add_u32 v5, {CB}, v5
  v_lshrrev_b32 v6, 7, v0
  v_lshlrev_b32 v6, 2, v6
  v_add_u32 v6, {CB+2048}, v6
""")
for w in range(8):
    e(f"  ds_read_b32 v{16+w}, v5 offset:{2080*w}\n  ds_read_b32 v{24+w}, v6 offset:{2080*w}\n  ds_read_b32 v{32+w}, v6 offset:{2080*w+16}")
e("  s_waitcnt lgkmcnt(0)\n  v_max3_f32 v40, v24, v25, v26\n  v_max3_f32 v40, v40, v27, v28\n  v_max3_f32 v40, v40, v29, v30\n  v_max_f32 v40, v40, v31\n  v_mov_b32 v41, 0\n  v_mov_b32 v42, 0")
for w in range(8):
    e(f"  v_sub_f32 v43, v{24+w}, v40\n  v_mul_f32 v43, s35, v43\n  v_exp_f32 v43, v43\n  s_nop 0\n  v_fmac_f32 v41, v43, v{16+w}\n  v_fmac_f32 v42, v43, v{32+w}")
e(f"""
  s_lshl_b32 s16, s14, 5
  s_add_u32 s16, s16, s15              ; kvh*32+chunk
  s_lshl_b32 s17, s16, 11
  s_add_u32 s17, s17, {WS_PO}
  v_lshl_add_u32 v5, v0, 2, s17
  global_store_dword v5, v41, s[12:13]
  v_and_b32 v6, 127, v0
  v_cmp_eq_u32 vcc, 0, v6
  s_and_saveexec_b64 s[36:37], vcc
  s_lshl_b32 s17, s16, 5
  s_add_u32 s17, s17, {WS_ML}
  v_lshrrev_b32 v6, 5, v0
  v_add_u32 v6, s17, v6
  global_store_dword v6, v40, s[12:13]
  global_store_dword v6, v42, s[12:13] offset:16
k2_end:
  s_endpgm
""")
kd("k2_kernel",192)

start("k3_kernel")
e(f"""
  s_cmp_ge_u32 s2, 80
  s_cbranch_scc1 k3_end
  s_load_dwordx2 s[4:5], s[0:1], 0
  s_load_dwordx2 s[6:7], s[0:1], 32
  s_load_dwordx2 s[8:9], s[0:1], 64
  s_load_dwordx2 s[10:11], s[0:1], 72
  s_load_dwordx2 s[12:13], s[0:1], 96
  s_load_dwordx2 s[14:15], s[0:1], 80
  s_load_dwordx2 s[16:17], s[0:1], 88
  s_mov_b32 s35, 0x3e0293ee
  s_cmp_ge_u32 s2, 64
  s_waitcnt lgkmcnt(0)
  s_cbranch_scc1 k3_g
  s_and_b32 s18, s2, 7
  s_lshr_b32 s19, s2, 3                ; kvh
  s_mov_b32 s24, s6
  s_mov_b32 s25, s7
  s_mov_b32 s26, 0x400000
  s_mov_b32 s27, 0x00020000
  v_lshrrev_b32 v4, 3, v0
  v_lshlrev_b32 v5, 10, v4
  v_and_b32 v6, 7, v0
  v_lshl_add_u32 v5, v6, 4, v5
  s_lshl_b32 s20, s19, 19
  s_lshl_b32 s21, s18, 7
  s_add_u32 s20, s20, s21
""")
for i in range(16):
    e(f"  buffer_load_dwordx4 v[{64+4*i}:{67+4*i}], v5, s[24:27], s20 offen\n  s_add_u32 s20, s20, 0x8000")
e(f"""
  s_lshl_b32 s20, s19, 10
  s_add_u32 s20, s20, {WS_ML}
  v_lshl_add_u32 v7, v0, 2, s20
  global_load_dword v8, v7, s[12:13]
  v_lshlrev_b32 v7, 2, v0
  s_waitcnt vmcnt(0)
  ds_write_b32 v7, v8 offset:9728
  s_lshl_b32 s20, s19, 16
  s_add_u32 s20, s20, {WS_PO}
  v_lshl_add_u32 v7, v0, 3, s20
""")
for c in range(32):
    e(f"  global_load_dwordx2 v[{128+2*c}:{129+2*c}], v7, s[12:13] offset:0\n  v_add_u32 v7, 0x800, v7")
e(f"""
  s_waitcnt lgkmcnt(0)
  s_barrier
  v_lshrrev_b32 v7, 6, v0
  v_lshlrev_b32 v7, 2, v7
  v_mov_b32 v9, 0xff800000
""")
for c in range(32):
    e(f"  ds_read_b32 v{32+c}, v7 offset:{9728+32*c}")
e("  s_waitcnt lgkmcnt(0)")
for c in range(32): e(f"  v_max_f32 v9, v9, v{32+c}")
e("  v_mov_b32 v10, 0\n  v_mov_b32 v11, 0\n  v_mov_b32 v12, 0")
for c in range(32):
    e(f"  v_sub_f32 v{32+c}, v{32+c}, v9\n  v_mul_f32 v{32+c}, s35, v{32+c}\n  v_exp_f32 v{32+c}, v{32+c}\n  ds_read_b32 v13, v7 offset:{9728+32*c+16}\n  s_waitcnt lgkmcnt(0)\n  v_fmac_f32 v10, v13, v{32+c}")
e("  s_waitcnt vmcnt(0)")
for c in range(32):
    e(f"  v_fmac_f32 v11, v{32+c}, v{128+2*c}\n  v_fmac_f32 v12, v{32+c}, v{129+2*c}")
e(f"""
  v_rcp_f32 v10, v10
  s_nop 0
  v_mul_f32 v11, v11, v10
  v_mul_f32 v12, v12, v10
  RBF v11
  RBF v12
  v_lshlrev_b32 v7, 3, v0
  ds_write_b32 v7, v11 offset:0
  ds_write_b32 v7, v12 offset:4
  s_waitcnt lgkmcnt(0)
  s_barrier
  v_lshlrev_b32 v4, 2, v4
""")
for i in range(16): e(f"  ds_read_b32 v{32+i}, v4 offset:{128*i}")
for i in range(8): e(f"  v_mov_b32 v{8+i}, 0")
e("  s_waitcnt lgkmcnt(0)")
for i in range(16): e(f"  FMA8 8, {64+4*i}, v{32+i}")
e(f"""
  s_barrier
  v_lshlrev_b32 v16, 5, v0
  ds_write_b128 v16, v[8:11]
  ds_write_b128 v16, v[12:15] offset:16
  s_waitcnt lgkmcnt(0)
  s_barrier
  v_and_b32 v16, 63, v0
  v_lshrrev_b32 v17, 6, v0
  v_lshlrev_b32 v17, 11, v17
  v_lshl_add_u32 v16, v16, 2, v17
""")
for i in range(8): e(f"  ds_read_b32 v{8+i}, v16 offset:{256*i}")
e(f"""
  s_waitcnt lgkmcnt(0)
  v_add_f32 v8, v8, v9
  v_add_f32 v10, v10, v11
  v_add_f32 v12, v12, v13
  v_add_f32 v14, v14, v15
  v_add_f32 v8, v8, v10
  v_add_f32 v12, v12, v14
  v_add_f32 v8, v8, v12
  v_lshlrev_b32 v16, 2, v0
  ds_write_b32 v16, v8 offset:8448
  s_waitcnt lgkmcnt(0)
  s_barrier
  v_cmp_gt_u32 vcc, 64, v0
  s_and_saveexec_b64 s[30:31], vcc
  s_cbranch_execz k3_end
  ds_read_b32 v8, v16 offset:8448
  ds_read_b32 v9, v16 offset:8704
  ds_read_b32 v10, v16 offset:8960
  ds_read_b32 v11, v16 offset:9216
  s_waitcnt lgkmcnt(0)
  v_add_f32 v8, v8, v9
  v_add_f32 v10, v10, v11
  v_add_f32 v8, v8, v10
  s_lshl_b32 s20, s19, 11
  s_lshl_b32 s21, s18, 8
  s_add_u32 s20, s20, s21
  s_add_u32 s20, s20, {WS_S3}
  v_add_u32 v16, s20, v16
  global_store_dword v16, v8, s[12:13] sc1
  s_branch k3_arrive
k3_g:
  s_sub_u32 s18, s2, 64
  s_mov_b32 s24, s8
  s_mov_b32 s25, s9
  s_mov_b32 s26, 0x1c0000
  s_mov_b32 s27, 0x00020000
  v_lshrrev_b32 v4, 2, v0
  v_lshlrev_b32 v5, 10, v4
  v_and_b32 v6, 3, v0
  v_lshl_add_u32 v5, v6, 4, v5
  s_lshl_b32 s20, s18, 6
""")
for i in range(28):
    e(f"  buffer_load_dwordx4 v[{64+4*i}:{67+4*i}], v5, s[24:27], s20 offen\n  s_add_u32 s20, s20, 0x10000")
e(f"  v_lshlrev_b32 v4, 2, v4\n  v_add_u32 v4, {WS_H}, v4")
for i in range(28): e(f"  global_load_dword v{32+i}, v4, s[12:13]\n  v_add_u32 v4, 0x100, v4")
for i in range(8): e(f"  v_mov_b32 v{8+i}, 0")
e("  s_waitcnt vmcnt(0)")
for i in range(28): e(f"  FMA8 8, {64+4*i}, v{32+i}")
red32()
e(f"""
  v_cmp_gt_u32 vcc, 32, v0
  s_and_saveexec_b64 s[30:31], vcc
  s_cbranch_execz k3_end
  s_lshl_b32 s20, s18, 6
  v_lshl_add_u32 v9, v0, 1, s20
  global_load_ushort v10, v9, s[10:11]
  RBF v8
  s_waitcnt vmcnt(0)
  v_lshlrev_b32 v10, 16, v10
  v_add_f32 v8, v8, v10
  RBF v8
  v_mul_f32 v10, 0xbfb8aa3b, v8
  v_exp_f32 v10, v10
  s_nop 0
  v_add_f32 v10, 1.0, v10
  v_rcp_f32 v10, v10
  s_nop 0
  v_mul_f32 v8, v8, v10
  RBF v8
  v_lshlrev_b32 v9, 1, v9
  v_add_u32 v9, {WS_G}, v9
  global_store_dword v9, v8, s[12:13] sc1
  s_lshr_b32 s18, s18, 1
k3_arrive:
  s_waitcnt vmcnt(0)
  s_lshl_b32 s20, s18, 2
  v_mov_b32 v9, s20
  v_mov_b32 v10, 1
  s_mov_b64 s[32:33], exec
  s_mov_b64 exec, 1
  global_atomic_add v11, v9, v10, s[16:17] sc0
  s_waitcnt vmcnt(0)
  v_readfirstlane_b32 s21, v11
  s_mov_b64 exec, -1
  s_cmp_eq_u32 s21, 9
  s_cbranch_scc0 k3_end
  v_and_b32 v1, 63, v0
  s_lshl_b32 s20, s18, 8
  v_lshl_add_u32 v9, v1, 2, s20
  v_add_u32 v10, {WS_S3}, v9
  v_add_u32 v11, {WS_G}, v9
  global_load_dword v20, v11, s[12:13] sc1
""")
for r in range(8): e(f"  global_load_dword v{24+r}, v10, s[12:13] sc1\n  v_add_u32 v10, 0x800, v10")
e(f"""
  v_lshrrev_b32 v9, 1, v9
  global_load_ushort v21, v9, s[4:5]
  s_waitcnt vmcnt(0)
  v_add_f32 v24, v24, v25
  v_add_f32 v26, v26, v27
  v_add_f32 v28, v28, v29
  v_add_f32 v30, v30, v31
  v_add_f32 v24, v24, v26
  v_add_f32 v28, v28, v30
  v_add_f32 v24, v24, v28
  RBF v24
  v_mul_f32 v24, v24, v20
  RBF v24
  v_lshlrev_b32 v21, 16, v21
  v_add_f32 v24, v24, v21
  v_cvt_pk_bf16_f32 v24, v24, v24
  global_store_short v9, v24, s[14:15]
k3_end:
  s_endpgm
""")
kd("k3_kernel",192)
open(f"cdna_kernels/{NAME}{EXP}.s","w").write("\n".join(L)+"\n")
```
